```python
import torch

def _softmax(x, axis=-1):
    return torch.softmax(x, dim=axis)
def _gelu(x):
    return torch.nn.functional.gelu(x, approximate="tanh")
def _silu(x):
    return torch.nn.functional.silu(x)
def _sigmoid(x):
    return torch.sigmoid(x)
def _layernorm(x, axis=-1, eps=1e-5):
    m = x.mean(dim=axis, keepdim=True)
    v = x.var(dim=axis, keepdim=True, unbiased=False)
    return (x - m) / torch.sqrt(v + eps)
def _scatter_add(tgt, idx, src, axis=0):
    return tgt.clone().index_add_(axis, idx, src)
def _segment_sum(src, seg, n):
    out = torch.zeros((n,) + src.shape[1:], dtype=src.dtype)
    return out.index_add_(0, seg, src)
def _pad(x, pw):
    flat = tuple(v for pair in reversed(pw) for v in pair)
    return torch.nn.functional.pad(x, flat)

kernel_name = 'standalone__grn__sampling'

def setup_inputs():

    _w = (lambda a: (lambda t: t.to(torch.bfloat16) if t.is_floating_point() else t)(torch.as_tensor(a)))
    B, S, D = 1024, 16, 448
    return {
        "x": _w((lambda *s: torch.randn(*s, dtype=torch.bfloat16) * 0.05)(B, S, D)),
        "g": _w((lambda *s: torch.randn(*s, dtype=torch.bfloat16) * 0.4)(D) * 0.1),
        "b": _w((lambda *s: torch.randn(*s, dtype=torch.bfloat16) * 0.1)(D) * 0.1),
    }

def reference(x, g, b):
    gx = torch.sqrt((x * x).sum(axis=-2, keepdims=True))
    nx = gx / (gx.mean(axis=-1, keepdims=True) + 1e-6)
    return g * (x * nx) + b + x
```

```python
import sys

def gen(block=64, ldflag="", stflag="", keep_unpacked=True):
    waves_per_wg = block // 64
    grid = 1024 // waves_per_wg
    L = []
    e = L.append
    e(f"; @launch grid=({grid},1,1) block=({block},1,1) lds=0")
    e('.amdgcn_target "amdgcn-amd-amdhsa--gfx950"')
    e(".text")
    e(".globl standalone__grn__sampling_kernel")
    e(".p2align 8")
    e(".type standalone__grn__sampling_kernel,@function")
    e("standalone__grn__sampling_kernel:")
    e("    s_load_dwordx4 s[4:7], s[0:1], 0      ; x, g")
    e("    s_load_dwordx4 s[8:11], s[0:1], 16    ; b, out")
    if waves_per_wg > 1:
        e("    v_lshrrev_b32 v1, 6, v0")
        e("    v_and_b32 v0, 63, v0")
        e("    v_readfirstlane_b32 s3, v1")
        e(f"    s_lshl_b32 s2, s2, {waves_per_wg.bit_length()-1}")
        e("    s_add_u32 s2, s2, s3")
    e("    s_cmp_ge_u32 s2, 1024")
    e("    s_cbranch_scc1 L_end")
    e("    s_mul_i32 s3, s2, 14336")
    e("    s_add_u32 s3, s3, 4096")
    e("    v_lshlrev_b32 v1, 4, v0              ; lane*16")
    e("    v_add_u32 v2, 0x1f80, v1             ; + 9 rows")
    e("    v_mov_b32 v3, 0")
    e("    s_mov_b32 exec_lo, -1")
    e("    s_mov_b32 exec_hi, 0x00ffffff")
    e("    s_waitcnt lgkmcnt(0)")
    e("    s_add_u32 s4, s4, s3")
    e("    s_addc_u32 s5, s5, 0")
    e("    s_add_u32 s10, s10, s3")
    e("    s_addc_u32 s11, s11, 0")
    RAW = 8
    def rowaddr(r):
        if r < 9:
            return "v1", r*896 - 4096
        return "v2", (r-9)*896 - 4096
    for r in range(16):
        a, o = rowaddr(r)
        e(f"    global_load_dwordx4 v[{RAW+4*r}:{RAW+4*r+3}], {a}, s[4:5] offset:{o} {ldflag}")
    G = 72; B = 76
    e(f"    global_load_dwordx4 v[{G}:{G+3}], v1, s[6:7]")
    e(f"    global_load_dwordx4 v[{B}:{B+3}], v1, s[8:9]")
    ACC = 80
    U = 88
    e("    s_mov_b32 s12, 0xffff0000")
    for r in range(16):
        e(f"    s_waitcnt vmcnt({16+2-1-r})")
        for d in range(4):
            src = RAW+4*r+d
            u = U + 8*r + 2*d
            e(f"    v_lshlrev_b32 v{u}, 16, v{src}")
            e(f"    v_and_b32 v{u+1}, s12, v{src}")
        for d in range(4):
            u = U + 8*r + 2*d
            a = ACC + 2*d
            if r == 0:
                e(f"    v_pk_mul_f32 v[{a}:{a+1}], v[{u}:{u+1}], v[{u}:{u+1}]")
            else:
                e(f"    v_pk_fma_f32 v[{a}:{a+1}], v[{u}:{u+1}], v[{u}:{u+1}], v[{a}:{a+1}]")
    for c in range(8):
        e(f"    v_sqrt_f32 v{ACC+c}, v{ACC+c}")
    e("    s_nop 0")
    e(f"    v_add_f32 v4, v{ACC}, v{ACC+1}")
    e(f"    v_add_f32 v5, v{ACC+2}, v{ACC+3}")
    e(f"    v_add_f32 v6, v{ACC+4}, v{ACC+5}")
    e(f"    v_add_f32 v7, v{ACC+6}, v{ACC+7}")
    e("    v_add_f32 v4, v4, v5")
    e("    v_add_f32 v6, v6, v7")
    e("    v_add_f32 v3, v4, v6")
    e("    s_mov_b64 exec, -1")
    e("    s_nop 1")
    for ctl in ["row_shr:1", "row_shr:2", "row_shr:4", "row_shr:8"]:
        e(f"    v_add_f32_dpp v3, v3, v3 {ctl} row_mask:0xf bank_mask:0xf bound_ctrl:1")
        e("    s_nop 1")
    e("    v_add_f32_dpp v3, v3, v3 row_bcast:15 row_mask:0xa bank_mask:0xf")
    e("    s_nop 1")
    e("    v_add_f32_dpp v3, v3, v3 row_bcast:31 row_mask:0xc bank_mask:0xf")
    e("    s_nop 0")
    e("    v_readlane_b32 s13, v3, 63")
    e("    s_mov_b32 exec_hi, 0x00ffffff")
    e("    s_mov_b32 s14, 0x3b124925            ; 1/448")
    e("    v_mov_b32 v4, 0x358637bd             ; 1e-6")
    e("    v_mov_b32 v5, s14")
    e("    v_fma_f32 v4, s13, v5, v4            ; mean + 1e-6")
    e("    v_rcp_f32 v4, v4")
    e("    s_waitcnt vmcnt(0)")
    GU = RAW; BU = RAW+8
    for d in range(4):
        e(f"    v_lshlrev_b32 v{GU+2*d}, 16, v{G+d}")
        e(f"    v_and_b32 v{GU+2*d+1}, s12, v{G+d}")
    for d in range(4):
        e(f"    v_lshlrev_b32 v{BU+2*d}, 16, v{B+d}")
        e(f"    v_and_b32 v{BU+2*d+1}, s12, v{B+d}")
    for c in range(8):
        e(f"    v_mul_f32 v{ACC+c}, v{ACC+c}, v4")
    for c in range(8):
        e(f"    v_fma_f32 v{ACC+c}, v{GU+c}, v{ACC+c}, 1.0")
    OUT = RAW + 16
    for r in range(16):
        o = OUT + 4*(r % 12)
        for d in range(4):
            u = U + 8*r + 2*d
            e(f"    v_pk_fma_f32 v[{u}:{u+1}], v[{u}:{u+1}], v[{ACC+2*d}:{ACC+2*d+1}], v[{BU+2*d}:{BU+2*d+1}]")
        for d in range(4):
            u = U + 8*r + 2*d
            e(f"    v_cvt_pk_bf16_f32 v{o+d}, v{u}, v{u+1}")
        a, off = rowaddr(r)
        e(f"    global_store_dwordx4 {a}, v[{o}:{o+3}], s[10:11] offset:{off} {stflag}")
    e("L_end:")
    e("    s_endpgm")
    nv = U + 128
    e('.section .rodata,"a"')
    e(".p2align 6")
    e(".amdhsa_kernel standalone__grn__sampling_kernel")
    e(f"  .amdhsa_next_free_vgpr {nv}")
    e("  .amdhsa_next_free_sgpr 24")
    e(f"  .amdhsa_accum_offset {(nv+3)//4*4}")
    e("  .amdhsa_group_segment_fixed_size 0")
    e("  .amdhsa_kernarg_size 48")
    e("  .amdhsa_user_sgpr_count 2")
    e("  .amdhsa_user_sgpr_kernarg_segment_ptr 1")
    e("  .amdhsa_system_sgpr_workgroup_id_x 1")
    e("  .amdhsa_float_denorm_mode_32 3")
    e(".end_amdhsa_kernel")
    return "\n".join(L) + "\n"

if __name__ == "__main__":
    open("variants/a_b64.s", "w").write(gen(64))
    open("variants/a_b256.s", "w").write(gen(256))
    open("variants/a_b256_nt.s", "w").write(gen(256, "nt", "nt"))
    open("variants/a_b256_sc.s", "w").write(gen(256, "", "sc0 sc1"))
    open("variants/a_b64_nt.s", "w").write(gen(64, "nt", "nt"))
```

```python
KNAME = "standalone__grn__sampling_kernel"

class Asm:
    def __init__(self):
        self.L = []
    def __call__(self, s):
        self.L.append("    " + s)
    def raw(self, s):
        self.L.append(s)
    def label(self, s):
        self.L.append(s + ":")
    def text(self):
        return "\n".join(self.L) + "\n"

def header(a, grid, block, lds, comments=()):
    for c in comments:
        a.raw("; " + c)
    a.raw(f"; @launch grid=({grid},1,1) block=({block},1,1) lds={lds}")
    a.raw('.amdgcn_target "amdgcn-amd-amdhsa--gfx950"')
    a.raw(".text")
    a.raw(f".globl {KNAME}")
    a.raw(".p2align 8")
    a.raw(f".type {KNAME},@function")
    a.raw(f"{KNAME}:")

def footer(a, nvgpr, nsgpr):
    a.raw('.section .rodata,"a"')
    a.raw(".p2align 6")
    a.raw(f".amdhsa_kernel {KNAME}")
    a.raw(f"  .amdhsa_next_free_vgpr {nvgpr}")
    a.raw(f"  .amdhsa_next_free_sgpr {nsgpr}")
    a.raw(f"  .amdhsa_accum_offset {(nvgpr+3)//4*4}")
    a.raw("  .amdhsa_group_segment_fixed_size 0")
    a.raw("  .amdhsa_kernarg_size 48")
    a.raw("  .amdhsa_user_sgpr_count 2")
    a.raw("  .amdhsa_user_sgpr_kernarg_segment_ptr 1")
    a.raw("  .amdhsa_system_sgpr_workgroup_id_x 1")
    a.raw("  .amdhsa_float_denorm_mode_32 3")
    a.raw(".end_amdhsa_kernel")

class Stamps:
    def __init__(self, mode, base=40):
        self.mode = mode
        self.base = base
        self.n = 0
    def __call__(self, a):
        if not self.mode:
            return
        r = self.base + 2*self.n
        a(f"s_memrealtime s[{r}:{r+1}]")
        self.n += 1
    def amplify(self, a, i, j, shift):
        ri = self.base + 2*i
        rj = self.base + 2*j
        a(f"s_sub_u32 s34, s{rj}, s{ri}")
        a("s_min_u32 s34, s34, 1000")
        a(f"s_lshl_b32 s34, s34, {shift}")
        a("s_memrealtime s[36:37]")
        a("s_waitcnt lgkmcnt(0)")
        a("s_add_u32 s34, s34, s36")
        a.label("L_spin")
        a("s_sleep 4")
        a("s_memrealtime s[36:37]")
        a("s_waitcnt lgkmcnt(0)")
        a("s_sub_u32 s35, s36, s34")
        a("s_cmp_lt_i32 s35, 0")
        a("s_cbranch_scc1 L_spin")
    def flush(self, a, wave_sgpr, vtmp0, vtmp1):
        if not self.mode:
            return
        if isinstance(self.mode, tuple):
            self.amplify(a, *self.mode)
            return
        a("s_mov_b64 exec, 1")
        if self.mode == "ws":
            a("s_load_dwordx2 s[32:33], s[0:1], 40")
            a(f"s_lshl_b32 s34, s{wave_sgpr}, 7")
            a(f"v_mov_b32 v{vtmp0}, s34")
            a("s_waitcnt lgkmcnt(0)")
            for i in range(self.n):
                r = self.base + 2*i
                a(f"v_mov_b32 v{vtmp1}, s{r}")
                a(f"v_mov_b32 v{vtmp1+1}, s{r+1}")
                a(f"global_store_dwordx2 v{vtmp0}, v[{vtmp1}:{vtmp1+1}], s[32:33] offset:{8*i}")
                a("s_nop 1")
        else:
            for _ in range(5):
                a("s_sleep 127")
            a("s_load_dwordx2 s[32:33], s[0:1], 32")
            a(f"v_mov_b32 v{vtmp0}, 0")
            a("s_waitcnt lgkmcnt(0)")
            for i in range(self.n):
                r = self.base + 2*i
                a(f"v_mov_b32 v{vtmp1}, s{r}")
                a(f"v_not_b32 v{vtmp1+1}, v{vtmp1}")
                a(f"global_atomic_umax v{vtmp0}, v{vtmp1+1}, s[32:33] offset:{8*i}")
                a(f"global_atomic_umax v{vtmp0}, v{vtmp1}, s[32:33] offset:{8*i+4}")
                a("s_nop 1")
```

```python
import sys
sys.path.insert(0, "gen")
from common import *

def gen(block=64, ldflag="", stflag="", stamps=None):
    waves_per_wg = block // 64
    grid = 1024 // waves_per_wg
    e = Asm()
    st = Stamps(stamps)
    header(e, grid, block, 0, ["GRN (ConvNeXt-V2 global response norm), x[1024,16,448] bf16",
                               "one wave per batch; lane l<56 owns channels 8l..8l+7 for all 16 rows"])
    st(e)
    e("s_load_dwordx4 s[4:7], s[0:1], 0      ; x, g")
    e("s_load_dwordx4 s[8:11], s[0:1], 16    ; b, out")
    if waves_per_wg > 1:
        e("v_lshrrev_b32 v1, 6, v0")
        e("v_and_b32 v0, 63, v0")
        e("v_readfirstlane_b32 s3, v1")
        e(f"s_lshl_b32 s2, s2, {waves_per_wg.bit_length()-1}")
        e("s_add_u32 s2, s2, s3")
    e("s_cmp_ge_u32 s2, 1024")
    e("s_cbranch_scc1 L_end")
    e("s_mul_i32 s3, s2, 14336")
    e("s_add_u32 s3, s3, 4096")
    e("v_lshlrev_b32 v1, 4, v0              ; lane*16")
    e("v_add_u32 v2, 0x1f80, v1             ; + 9 rows")
    e("v_mov_b32 v3, 0")
    e("s_mov_b32 exec_lo, -1")
    e("s_mov_b32 exec_hi, 0x00ffffff")
    e("s_waitcnt lgkmcnt(0)")
    st(e)
    e("s_add_u32 s4, s4, s3")
    e("s_addc_u32 s5, s5, 0")
    e("s_add_u32 s10, s10, s3")
    e("s_addc_u32 s11, s11, 0")
    RAW = 8
    def rowaddr(r):
        if r < 9:
            return "v1", r*896 - 4096
        return "v2", (r-9)*896 - 4096
    for r in range(16):
        a, o = rowaddr(r)
        e(f"global_load_dwordx4 v[{RAW+4*r}:{RAW+4*r+3}], {a}, s[4:5] offset:{o} {ldflag}")
    G = 72; B = 76
    e(f"global_load_dwordx4 v[{G}:{G+3}], v1, s[6:7]")
    e(f"global_load_dwordx4 v[{B}:{B+3}], v1, s[8:9]")
    st(e)
    ACC = 80
    U = 88
    e("s_mov_b32 s12, 0xffff0000")
    for r in range(16):
        e(f"s_waitcnt vmcnt({16+2-1-r})")
        if r == 0:
            st(e)
        for d in range(4):
            src = RAW+4*r+d
            u = U + 8*r + 2*d
            e(f"v_lshlrev_b32 v{u}, 16, v{src}")
            e(f"v_and_b32 v{u+1}, s12, v{src}")
        for d in range(4):
            u = U + 8*r + 2*d
            a = ACC + 2*d
            if r == 0:
                e(f"v_pk_mul_f32 v[{a}:{a+1}], v[{u}:{u+1}], v[{u}:{u+1}]")
            else:
                e(f"v_pk_fma_f32 v[{a}:{a+1}], v[{u}:{u+1}], v[{u}:{u+1}], v[{a}:{a+1}]")
    st(e)
    for c in range(8):
        e(f"v_sqrt_f32 v{ACC+c}, v{ACC+c}")
    e("s_nop 0")
    e(f"v_add_f32 v4, v{ACC}, v{ACC+1}")
    e(f"v_add_f32 v5, v{ACC+2}, v{ACC+3}")
    e(f"v_add_f32 v6, v{ACC+4}, v{ACC+5}")
    e(f"v_add_f32 v7, v{ACC+6}, v{ACC+7}")
    e("v_add_f32 v4, v4, v5")
    e("v_add_f32 v6, v6, v7")
    e("v_add_f32 v3, v4, v6")
    e("s_mov_b64 exec, -1")
    e("s_nop 1")
    for ctl in ["row_shr:1", "row_shr:2", "row_shr:4", "row_shr:8"]:
        e(f"v_add_f32_dpp v3, v3, v3 {ctl} row_mask:0xf bank_mask:0xf bound_ctrl:1")
        e("s_nop 1")
    e("v_add_f32_dpp v3, v3, v3 row_bcast:15 row_mask:0xa bank_mask:0xf")
    e("s_nop 1")
    e("v_add_f32_dpp v3, v3, v3 row_bcast:31 row_mask:0xc bank_mask:0xf")
    e("s_nop 0")
    e("v_readlane_b32 s13, v3, 63")
    e("s_mov_b32 exec_hi, 0x00ffffff")
    e("s_mov_b32 s14, 0x3b124925            ; 1/448")
    e("v_mov_b32 v4, 0x358637bd             ; 1e-6")
    e("v_mov_b32 v5, s14")
    e("v_fma_f32 v4, s13, v5, v4            ; mean + 1e-6")
    e("v_rcp_f32 v4, v4")
    e("s_waitcnt vmcnt(0)")
    GU = RAW; BU = RAW+8
    for d in range(4):
        e(f"v_lshlrev_b32 v{GU+2*d}, 16, v{G+d}")
        e(f"v_and_b32 v{GU+2*d+1}, s12, v{G+d}")
    for d in range(4):
        e(f"v_lshlrev_b32 v{BU+2*d}, 16, v{B+d}")
        e(f"v_and_b32 v{BU+2*d+1}, s12, v{B+d}")
    for c in range(8):
        e(f"v_mul_f32 v{ACC+c}, v{ACC+c}, v4")
    for c in range(8):
        e(f"v_fma_f32 v{ACC+c}, v{GU+c}, v{ACC+c}, 1.0")
    st(e)
    OUT = RAW + 16
    for r in range(16):
        o = OUT + 4*(r % 12)
        for d in range(4):
            u = U + 8*r + 2*d
            e(f"v_pk_fma_f32 v[{u}:{u+1}], v[{u}:{u+1}], v[{ACC+2*d}:{ACC+2*d+1}], v[{BU+2*d}:{BU+2*d+1}]")
        for d in range(4):
            u = U + 8*r + 2*d
            e(f"v_cvt_pk_bf16_f32 v{o+d}, v{u}, v{u+1}")
        a, off = rowaddr(r)
        e(f"global_store_dwordx4 {a}, v[{o}:{o+3}], s[10:11] offset:{off} {stflag}")
    st(e)
    if stamps:
        e("s_waitcnt vmcnt(0)")
        st(e)
        e("s_waitcnt lgkmcnt(0)")
        st.flush(e, 2, 4, 6)
    e.label("L_end")
    e("s_endpgm")
    footer(e, U + 128, 64 if stamps else 24)
    return e.text()

if __name__ == "__main__":
    W = lambda n, t: open(f"variants/{n}.s", "w").write(t)
    W("a_b64", gen(64))
    W("a_b256", gen(256))
    W("a_b256_nt", gen(256, "nt", "nt"))
    W("a_b256_sc", gen(256, "", "sc0 sc1"))
    W("a_b64_nt", gen(64, "nt", "nt"))
    W("a_b256_nt_dbg", gen(256, "nt", "nt", "dbg"))
    W("a_b256_nt_ws", gen(256, "nt", "nt", "ws"))
    W("a_b64_dbg", gen(64, "", "", "dbg"))
    W("a_b64_ws", gen(64, "", "", "ws"))
```

```python
import sys
sys.path.insert(0,"gen")
from gen_a import gen
W = lambda n, t: open(f"variants/{n}.s", "w").write(t)
for (i,j) in [(0,1),(1,2),(1,3),(1,4),(4,5),(5,6),(6,7),(5,7),(0,7)]:
    W(f"amp_{i}{j}", gen(256,"","sc1 nt",(i,j,4)))
```

```python
KNAME = "standalone__grn__sampling_kernel"

class Asm:
    def __init__(self):
        self.L = []
    def __call__(self, s):
        self.L.append("    " + s)
    def raw(self, s):
        self.L.append(s)
    def label(self, s):
        self.L.append(s + ":")
    def text(self):
        return "\n".join(self.L) + "\n"

def header(a, grid, block, lds, comments=()):
    for c in comments:
        a.raw("; " + c)
    a.raw(f"; @launch grid=({grid},1,1) block=({block},1,1) lds={lds}")
    a.raw('.amdgcn_target "amdgcn-amd-amdhsa--gfx950"')
    a.raw(".text")
    a.raw(f".globl {KNAME}")
    a.raw(".p2align 8")
    a.raw(f".type {KNAME},@function")
    a.raw(f"{KNAME}:")

def footer(a, nvgpr, nsgpr):
    a.raw('.section .rodata,"a"')
    a.raw(".p2align 6")
    a.raw(f".amdhsa_kernel {KNAME}")
    a.raw(f"  .amdhsa_next_free_vgpr {nvgpr}")
    a.raw(f"  .amdhsa_next_free_sgpr {nsgpr}")
    a.raw(f"  .amdhsa_accum_offset {(nvgpr+3)//4*4}")
    a.raw("  .amdhsa_group_segment_fixed_size 0")
    a.raw("  .amdhsa_kernarg_size 48")
    a.raw("  .amdhsa_user_sgpr_count 2")
    a.raw("  .amdhsa_user_sgpr_kernarg_segment_ptr 1")
    a.raw("  .amdhsa_system_sgpr_workgroup_id_x 1")
    a.raw("  .amdhsa_float_denorm_mode_32 3")
    a.raw(".end_amdhsa_kernel")

class Stamps:
    def __init__(self, mode, base=40):
        self.mode = mode
        self.base = base
        self.n = 0
    def __call__(self, a):
        if not self.mode:
            return
        r = self.base + 2*self.n
        a(f"s_memrealtime s[{r}:{r+1}]")
        self.n += 1
    def publish_t0(self, a, wave_sgpr, vt0, vt1):
        if not (isinstance(self.mode, tuple) and self.mode[0] == "g"):
            return
        a(f"s_cmp_lg_u32 s{wave_sgpr}, 0")
        a("s_cbranch_scc1 L_nopub")
        a("s_waitcnt lgkmcnt(0)")
        a(f"v_mov_b32 v{vt0}, 0")
        a(f"v_mov_b32 v{vt1}, s{self.base}")
        a(f"global_store_dword v{vt0}, v{vt1}, s[32:33] sc0 sc1")
        a.label("L_nopub")
    def load_dbgptr(self, a):
        if isinstance(self.mode, tuple) and self.mode[0] == "g":
            a("s_load_dwordx2 s[32:33], s[0:1], 32")
    def amplify(self, a, i, j, shift):
        rj = self.base + 2*j
        if i == "g":
            a("s_mov_b64 exec, -1")
            a("v_mov_b32 v4, 0")
            a("s_movk_i32 s39, 200")
            a.label("L_rd")
            a("global_load_dword v5, v4, s[32:33] sc0 sc1")
            a("s_waitcnt vmcnt(0)")
            a("v_readfirstlane_b32 s38, v5")
            a("s_sub_u32 s39, s39, 1")
            a("s_cmp_eq_u32 s39, 0")
            a("s_cbranch_scc1 L_rdx")
            a("s_cmp_eq_u32 s38, 0")
            a("s_cbranch_scc1 L_rd")
            a.label("L_rdx")
            ri = 38
            a("s_nop 1")
        else:
            ri = self.base + 2*i
        a(f"s_sub_u32 s34, s{rj}, s{ri}")
        a("s_min_u32 s34, s34, 1000")
        a(f"s_lshl_b32 s34, s34, {shift}")
        a("s_memrealtime s[36:37]")
        a("s_waitcnt lgkmcnt(0)")
        a("s_add_u32 s34, s34, s36")
        a.label("L_spin")
        a("s_sleep 4")
        a("s_memrealtime s[36:37]")
        a("s_waitcnt lgkmcnt(0)")
        a("s_sub_u32 s35, s36, s34")
        a("s_cmp_lt_i32 s35, 0")
        a("s_cbranch_scc1 L_spin")
    def flush(self, a, wave_sgpr, vtmp0, vtmp1):
        if not self.mode:
            return
        if isinstance(self.mode, tuple):
            self.amplify(a, *self.mode)
            return
        a("s_mov_b64 exec, 1")
        if self.mode == "ws":
            a("s_load_dwordx2 s[32:33], s[0:1], 40")
            a(f"s_lshl_b32 s34, s{wave_sgpr}, 7")
            a(f"v_mov_b32 v{vtmp0}, s34")
            a("s_waitcnt lgkmcnt(0)")
            for i in range(self.n):
                r = self.base + 2*i
                a(f"v_mov_b32 v{vtmp1}, s{r}")
                a(f"v_mov_b32 v{vtmp1+1}, s{r+1}")
                a(f"global_store_dwordx2 v{vtmp0}, v[{vtmp1}:{vtmp1+1}], s[32:33] offset:{8*i}")
                a("s_nop 1")
            a("s_getreg_b32 s34, hwreg(HW_REG_XCC_ID)")
            a("s_getreg_b32 s35, hwreg(HW_REG_HW_ID)")
            a(f"v_mov_b32 v{vtmp1}, s34")
            a(f"v_mov_b32 v{vtmp1+1}, s35")
            a(f"global_store_dwordx2 v{vtmp0}, v[{vtmp1}:{vtmp1+1}], s[32:33] offset:120")
        else:
            for _ in range(5):
                a("s_sleep 127")
            a("s_load_dwordx2 s[32:33], s[0:1], 32")
            a(f"v_mov_b32 v{vtmp0}, 0")
            a("s_waitcnt lgkmcnt(0)")
            for i in range(self.n):
                r = self.base + 2*i
                a(f"v_mov_b32 v{vtmp1}, s{r}")
                a(f"v_not_b32 v{vtmp1+1}, v{vtmp1}")
                a(f"global_atomic_umax v{vtmp0}, v{vtmp1+1}, s[32:33] offset:{8*i}")
                a(f"global_atomic_umax v{vtmp0}, v{vtmp1}, s[32:33] offset:{8*i+4}")
                a("s_nop 1")
```

```python
import sys
sys.path.insert(0, "gen")
from common import *

def gen(block=256, ldflag="nt", stflag="sc0 sc1 nt", stamps=None, gbpos=0, gbflag="", xmap=0):
    waves_per_wg = block // 64
    grid = 1024 // waves_per_wg
    e = Asm()
    st = Stamps(stamps)
    header(e, grid, block, 0, ["GRN (ConvNeXt-V2 global response norm), x[1024,16,448] bf16",
                               "out = x*(g*nx+1)+b,  nx = gx/(mean_c(gx)+1e-6),  gx = sqrt(sum_rows x^2)",
                               "one wave per batch element; lane l<56 owns channels 8l..8l+7 of all 16 rows"])
    st(e)
    e("s_load_dwordx8 s[4:11], s[0:1], 0     ; x, g, b, out")
    st.load_dbgptr(e)
    if xmap:
        assert waves_per_wg == 4
        e("v_lshrrev_b32 v1, 6, v0")
        e("v_and_b32 v0, 63, v0")
        e("v_readfirstlane_b32 s3, v1")
        e("s_cmp_ge_u32 s2, 256")
        e("s_cbranch_scc1 L_end")
        if xmap == 1:
            e("s_and_b32 s13, s2, 7")
            e("s_lshr_b32 s2, s2, 3")
            e("s_lshl_b32 s13, s13, 7")
            e("s_lshl_b32 s2, s2, 2")
            e("s_add_u32 s2, s2, s13")
            e("s_add_u32 s2, s2, s3")
        elif xmap == 2:
            e("s_lshl_b32 s3, s3, 8")
            e("s_add_u32 s2, s2, s3")
    else:
        if waves_per_wg > 1:
            e("v_lshrrev_b32 v1, 6, v0")
            e("v_and_b32 v0, 63, v0")
            e("v_readfirstlane_b32 s3, v1")
            e(f"s_lshl_b32 s2, s2, {waves_per_wg.bit_length()-1}")
            e("s_add_u32 s2, s2, s3")
        e("s_cmp_ge_u32 s2, 1024")
        e("s_cbranch_scc1 L_end")
    e("s_mul_i32 s3, s2, 14336")
    e("s_add_u32 s3, s3, 4096                ; bias: rows 0..8 reachable with signed 13-bit offsets")
    e("v_lshlrev_b32 v3, 4, v0")
    e("v_add_u32 v1, s3, v3                  ; rows 0..8")
    e("v_add_u32 v2, 0x1f80, v1              ; rows 9..15")
    e("s_mov_b32 s12, 0xffff0000")
    e("v_mov_b32 v4, 0x358637bd              ; 1e-6")
    e("v_mov_b32 v5, 0x3b124925              ; 1/448")
    e("v_mov_b32 v6, 1.0")
    e("v_mov_b32 v0, 0")
    e("s_mov_b32 exec_hi, 0x00ffffff")
    e("s_waitcnt lgkmcnt(0)")
    st(e)
    RAW = 8
    G = 72; B = 76
    ACC = 80
    GU = 88; BU = 96
    U = 104
    def rowaddr(r):
        if r < 9:
            return "v1", r*896 - 4096
        return "v2", (r-9)*896 - 4096
    ops = []
    for r in range(16):
        a, o = rowaddr(r)
        ops.append(("row", r, f"global_load_dwordx4 v[{RAW+4*r}:{RAW+4*r+3}], {a}, s[4:5] offset:{o} {ldflag}"))
    gb = [("g", 0, f"global_load_dwordx4 v[{G}:{G+3}], v3, s[6:7] {gbflag}"),
          ("b", 0, f"global_load_dwordx4 v[{B}:{B+3}], v3, s[8:9] {gbflag}")]
    ops = ops[:gbpos] + gb + ops[gbpos:]
    for k, r, t in ops:
        e(t)
    st(e)
    st.publish_t0(e, 2, 7, 72+0) if False else None
    if isinstance(stamps, tuple) and stamps[0] == "g":
        st.publish_t0(e, 2, 0, 7)
    n = len(ops)
    idx = {(k, r): i for i, (k, r, _) in enumerate(ops)}
    def unpack_gb():
        for d in range(4):
            e(f"v_lshlrev_b32 v{GU+2*d}, 16, v{G+d}")
            e(f"v_and_b32 v{GU+2*d+1}, s12, v{G+d}")
        for d in range(4):
            e(f"v_lshlrev_b32 v{BU+2*d}, 16, v{B+d}")
            e(f"v_and_b32 v{BU+2*d+1}, s12, v{B+d}")
    gb_done = False
    for r in range(16):
        need = idx[("row", r)]
        e(f"s_waitcnt vmcnt({n - need - 1})")
        if r == 0:
            st(e)
        for d in range(4):
            src = RAW+4*r+d
            u = U + 8*r + 2*d
            e(f"v_lshlrev_b32 v{u}, 16, v{src}")
            e(f"v_and_b32 v{u+1}, s12, v{src}")
        for d in range(4):
            u = U + 8*r + 2*d
            a = ACC + 2*d
            if r == 0:
                e(f"v_pk_mul_f32 v[{a}:{a+1}], v[{u}:{u+1}], v[{u}:{u+1}]")
            else:
                e(f"v_pk_fma_f32 v[{a}:{a+1}], v[{u}:{u+1}], v[{u}:{u+1}], v[{a}:{a+1}]")
        if not gb_done and r < 15 and idx[("b", 0)] < idx[("row", r)]:
            unpack_gb(); gb_done = True
    if not gb_done:
        e("s_waitcnt vmcnt(0)")
        unpack_gb()
    st(e)
    for c in range(8):
        e(f"v_sqrt_f32 v{ACC+c}, v{ACC+c}")
    e("s_nop 0")
    T = RAW
    e(f"v_pk_add_f32 v[{T}:{T+1}], v[{ACC}:{ACC+1}], v[{ACC+2}:{ACC+3}]")
    e(f"v_pk_add_f32 v[{T+2}:{T+3}], v[{ACC+4}:{ACC+5}], v[{ACC+6}:{ACC+7}]")
    e(f"v_pk_add_f32 v[{T}:{T+1}], v[{T}:{T+1}], v[{T+2}:{T+3}]")
    e(f"v_add_f32 v0, v{T}, v{T+1}")
    e("s_mov_b32 exec_hi, -1")
    e("s_nop 0")
    fill = [f"v_pk_mul_f32 v[{ACC+2*d}:{ACC+2*d+1}], v[{ACC+2*d}:{ACC+2*d+1}], v[{GU+2*d}:{GU+2*d+1}]" for d in range(4)]
    steps = [f"v_add_f32_dpp v0, v0, v0 {c} row_mask:0xf bank_mask:0xf bound_ctrl:1" for c in ["row_shr:1", "row_shr:2", "row_shr:4", "row_shr:8"]]
    steps += ["v_add_f32_dpp v0, v0, v0 row_bcast:15 row_mask:0xa bank_mask:0xf",
              "v_add_f32_dpp v0, v0, v0 row_bcast:31 row_mask:0xc bank_mask:0xf"]
    for i, s in enumerate(steps):
        e(s)
        if i < 4:
            e(fill[i])
            e("s_nop 0")
        elif i == 4:
            e("s_nop 1")
        else:
            e("s_nop 0")
    e("v_readlane_b32 s13, v0, 63")
    e("s_mov_b32 exec_hi, 0x00ffffff")
    e("s_nop 0")
    e("v_fma_f32 v4, s13, v5, v4             ; mean + 1e-6")
    e("v_rcp_f32 v4, v4")
    e("s_nop 0")
    for d in range(4):
        e(f"v_pk_fma_f32 v[{ACC+2*d}:{ACC+2*d+1}], v[{ACC+2*d}:{ACC+2*d+1}], v[4:5], v[6:7] op_sel_hi:[1,0,0]   ; g*nx + 1")
    st(e)
    OUT = RAW
    for r in range(16):
        o = OUT + 4*r
        for d in range(4):
            u = U + 8*r + 2*d
            e(f"v_pk_fma_f32 v[{u}:{u+1}], v[{u}:{u+1}], v[{ACC+2*d}:{ACC+2*d+1}], v[{BU+2*d}:{BU+2*d+1}]")
        for d in range(4):
            u = U + 8*r + 2*d
            e(f"v_cvt_pk_bf16_f32 v{o+d}, v{u}, v{u+1}")
        a, off = rowaddr(r)
        sf = stflag(r) if callable(stflag) else stflag
        e(f"global_store_dwordx4 {a}, v[{o}:{o+3}], s[10:11] offset:{off} {sf}")
    st(e)
    if stamps:
        e("s_waitcnt vmcnt(0)")
        st(e)
        e("s_waitcnt lgkmcnt(0)")
        st.flush(e, 2, 4, 6)
    e.label("L_end")
    e("s_endpgm")
    footer(e, U + 128, 64 if stamps else 24)
    return e.text()

if __name__ == "__main__":
    W = lambda n, t: open(f"variants/{n}.s", "w").write(t)
    for pre, stamps in (("ge", ("g",7,4)), ("ws", "ws"), ("pl", None)):
        W(f"{pre}_a2", gen(stamps=stamps))
        W(f"{pre}_a2gb16", gen(stamps=stamps, gbpos=16))
        W(f"{pre}_a2gb4", gen(stamps=stamps, gbpos=4))
        W(f"{pre}_a2gb8", gen(stamps=stamps, gbpos=8))
        W(f"{pre}_a2x1", gen(stamps=stamps, gbpos=4, xmap=1))
        W(f"{pre}_a2x2", gen(stamps=stamps, gbpos=4, xmap=2))
```

```python
import sys
sys.path.insert(0,"gen")
from gen_a2 import gen
t = gen(block=256, ldflag="nt", stflag="sc0 sc1 nt", stamps=None, gbpos=4)
hdr = """; GRN (global response norm), x[1024,16,448] bf16, g[448], b[448] bf16 -> out[1024,16,448] bf16
"""
lines = t.split("\n")
body = [l for l in lines if not (l.startswith(";") and not l.startswith("; @launch"))]
out = hdr + "\n".join(l.rstrip() for l in body)
open("standalone__grn__sampling.s","w").write(out)
```

```python
import sys
sys.path.insert(0,"gen")
from gen_a2 import gen
W = lambda n, t: open(f"cmp/{n}.s", "w").write(t)
WT="sc0 sc1 nt"
for k in (1,2):
    W(f"M8_{k}", gen(gbpos=4, stflag=lambda r: "nt" if r < 8 else WT))
    W(f"M12_{k}", gen(gbpos=4, stflag=lambda r: "nt" if r < 12 else WT))
    W(f"R8_{k}", gen(gbpos=4, stflag=lambda r: WT if r < 8 else "nt"))
    W(f"N_{k}", gen(gbpos=4, stflag="nt"))
    W(f"H{k}", gen(gbpos=4))
```

```python
import sys
sys.path.insert(0, "gen")
from common import *

def gen(block=64, ldflag="", stflag="", stamps=None, bar=False, lim=0, tlb=False, gbfirst=False, ord2=0):
    waves_per_wg = block // 64
    grid = 1024 // waves_per_wg
    e = Asm()
    st = Stamps(stamps)
    header(e, grid, block, 0, ["GRN (ConvNeXt-V2 global response norm), x[1024,16,448] bf16",
                               "one wave per batch; lane l<56 owns channels 8l..8l+7 for all 16 rows"])
    st(e)
    e("s_load_dwordx4 s[4:7], s[0:1], 0      ; x, g")
    e("s_load_dwordx4 s[8:11], s[0:1], 16    ; b, out")
    st.load_dbgptr(e)
    if waves_per_wg > 1:
        e("v_lshrrev_b32 v1, 6, v0")
        e("v_and_b32 v0, 63, v0")
        e("v_readfirstlane_b32 s3, v1")
        if ord2:
            e("s_mov_b32 s15, s3")
        e(f"s_lshl_b32 s2, s2, {waves_per_wg.bit_length()-1}")
        e("s_add_u32 s2, s2, s3")
    e("s_cmp_ge_u32 s2, 1024")
    e("s_cbranch_scc1 L_end")
    e("s_mul_i32 s3, s2, 14336")
    e("s_add_u32 s3, s3, 4096               ; bias so that rows 0..8 are reachable with signed offsets")
    e("v_lshlrev_b32 v1, 4, v0              ; lane*16")
    e("v_add_u32 v2, 0x1f80, v1             ; + 9 rows")
    e("v_mov_b32 v3, 0")
    e("s_mov_b32 exec_lo, -1")
    e("s_mov_b32 exec_hi, 0x00ffffff")
    e("s_waitcnt lgkmcnt(0)")
    st(e)
    e("s_add_u32 s4, s4, s3")
    e("s_addc_u32 s5, s5, 0")
    e("s_add_u32 s10, s10, s3")
    e("s_addc_u32 s11, s11, 0")
    RAW = 8
    def rowaddr(r):
        if r < 9:
            return "v1", r*896 - 4096
        return "v2", (r-9)*896 - 4096
    G = 72; B = 76
    ops = []
    for r in range(16):
        a, o = rowaddr(r)
        ops.append(("row", r, f"global_load_dwordx4 v[{RAW+4*r}:{RAW+4*r+3}], {a}, s[4:5] offset:{o} {ldflag}"))
    gb = [("g", 0, f"global_load_dwordx4 v[{G}:{G+3}], v1, s[6:7]"),
          ("b", 0, f"global_load_dwordx4 v[{B}:{B+3}], v1, s[8:9]")]
    ops = gb + ops if gbfirst else ops + gb
    if tlb:
        t = ("t", 0, "global_load_dword v0, v3, s[10:11] nt")
        if tlb == "first": ops = [t] + ops
        elif tlb == "mid": ops = ops[:4] + [t] + ops[4:]
        else: ops = ops + [t]
    idx = {r: i for i, (k, r, _) in enumerate(ops) if k == "row"}
    first = len(ops) if not lim else idx[0] + lim
    issued = 0
    if ord2:
        e(f"s_cmp_lt_u32 s15, {ord2}")
        e("s_cbranch_scc1 L_g0")
        e("s_barrier")
        e.label("L_g0")
    while issued < first:
        e(ops[issued][2]); issued += 1
    if ord2:
        e(f"s_cmp_ge_u32 s15, {ord2}")
        e("s_cbranch_scc1 L_g1")
        e("s_barrier")
        e.label("L_g1")
    st(e)
    st.publish_t0(e, 2, 4, 5)
    ACC = 80
    U = 88
    e("s_mov_b32 s12, 0xffff0000")
    for r in range(16):
        e(f"s_waitcnt vmcnt({issued - idx[r] - 1})")
        if issued < len(ops):
            e(ops[issued][2]); issued += 1
            if r == 15 or (issued < len(ops) and ops[issued][0] != "row"):
                while issued < len(ops):
                    e(ops[issued][2]); issued += 1
        if r == 0:
            st(e)
        for d in range(4):
            src = RAW+4*r+d
            u = U + 8*r + 2*d
            e(f"v_lshlrev_b32 v{u}, 16, v{src}")
            e(f"v_and_b32 v{u+1}, s12, v{src}")
        for d in range(4):
            u = U + 8*r + 2*d
            a = ACC + 2*d
            if r == 0:
                e(f"v_pk_mul_f32 v[{a}:{a+1}], v[{u}:{u+1}], v[{u}:{u+1}]")
            else:
                e(f"v_pk_fma_f32 v[{a}:{a+1}], v[{u}:{u+1}], v[{u}:{u+1}], v[{a}:{a+1}]")
    st(e)
    for c in range(8):
        e(f"v_sqrt_f32 v{ACC+c}, v{ACC+c}")
    e("s_nop 0")
    e(f"v_add_f32 v4, v{ACC}, v{ACC+1}")
    e(f"v_add_f32 v5, v{ACC+2}, v{ACC+3}")
    e(f"v_add_f32 v6, v{ACC+4}, v{ACC+5}")
    e(f"v_add_f32 v7, v{ACC+6}, v{ACC+7}")
    e("v_add_f32 v4, v4, v5")
    e("v_add_f32 v6, v6, v7")
    e("v_add_f32 v3, v4, v6")
    e("s_mov_b64 exec, -1")
    e("s_nop 1")
    for ctl in ["row_shr:1", "row_shr:2", "row_shr:4", "row_shr:8"]:
        e(f"v_add_f32_dpp v3, v3, v3 {ctl} row_mask:0xf bank_mask:0xf bound_ctrl:1")
        e("s_nop 1")
    e("v_add_f32_dpp v3, v3, v3 row_bcast:15 row_mask:0xa bank_mask:0xf")
    e("s_nop 1")
    e("v_add_f32_dpp v3, v3, v3 row_bcast:31 row_mask:0xc bank_mask:0xf")
    e("s_nop 0")
    e("v_readlane_b32 s13, v3, 63")
    e("s_mov_b32 exec_hi, 0x00ffffff")
    e("s_mov_b32 s14, 0x3b124925            ; 1/448")
    e("v_mov_b32 v4, 0x358637bd             ; 1e-6")
    e("v_mov_b32 v5, s14")
    e("v_fma_f32 v4, s13, v5, v4            ; mean + 1e-6")
    e("v_rcp_f32 v4, v4")
    e("s_waitcnt vmcnt(0)")
    GU = RAW; BU = RAW+8
    for d in range(4):
        e(f"v_lshlrev_b32 v{GU+2*d}, 16, v{G+d}")
        e(f"v_and_b32 v{GU+2*d+1}, s12, v{G+d}")
    for d in range(4):
        e(f"v_lshlrev_b32 v{BU+2*d}, 16, v{B+d}")
        e(f"v_and_b32 v{BU+2*d+1}, s12, v{B+d}")
    for c in range(8):
        e(f"v_mul_f32 v{ACC+c}, v{ACC+c}, v4")
    for c in range(8):
        e(f"v_fma_f32 v{ACC+c}, v{GU+c}, v{ACC+c}, 1.0")
    if bar:
        e("s_barrier")
    st(e)
    OUT = RAW + 16
    for r in range(16):
        o = OUT + 4*(r % 12)
        for d in range(4):
            u = U + 8*r + 2*d
            e(f"v_pk_fma_f32 v[{u}:{u+1}], v[{u}:{u+1}], v[{ACC+2*d}:{ACC+2*d+1}], v[{BU+2*d}:{BU+2*d+1}]")
        for d in range(4):
            u = U + 8*r + 2*d
            e(f"v_cvt_pk_bf16_f32 v{o+d}, v{u}, v{u+1}")
        a, off = rowaddr(r)
        e(f"global_store_dwordx4 {a}, v[{o}:{o+3}], s[10:11] offset:{off} {stflag}")
    st(e)
    if stamps:
        e("s_waitcnt vmcnt(0)")
        st(e)
        e("s_waitcnt lgkmcnt(0)")
        st.flush(e, 2, 4, 6)
    e.label("L_end")
    e("s_endpgm")
    footer(e, U + 128, 64 if stamps else 24)
    return e.text()

if __name__ == "__main__":
    W = lambda n, t: open(f"variants/{n}.s", "w").write(t)
    W("a_b64", gen(64))
    W("a_b256", gen(256))
    W("a_b256_nt", gen(256, "nt", "nt"))
    W("a_b256_sc", gen(256, "", "sc0 sc1"))
    W("a_b64_nt", gen(64, "nt", "nt"))
    W("a_b256_nt_dbg", gen(256, "nt", "nt", "dbg"))
    W("a_b256_nt_ws", gen(256, "nt", "nt", "ws"))
    W("a_b64_dbg", gen(64, "", "", "dbg"))
    W("a_b64_ws", gen(64, "", "", "ws"))
```

```python
import sys
sys.path.insert(0,"gen")
from common import *
W = lambda n, t: open(f"variants/{n}.s", "w").write(t)
TOTAL = 1024*16*896
def gen(rows, block, ld="", st="", mode="copy", lanes=56, stamps=None):
    chunk = lanes*16
    nwaves = TOTAL // (chunk*rows)
    wpw = block//64
    grid = nwaves // wpw
    e = Asm()
    s = Stamps(stamps)
    header(e, grid, block, 0, ["copy microbenchmark"])
    s(e)
    e("s_load_dwordx4 s[4:7], s[0:1], 0")
    e("s_load_dwordx4 s[8:11], s[0:1], 16")
    if wpw > 1:
        e("v_lshrrev_b32 v1, 6, v0")
        e("v_and_b32 v0, 63, v0")
        e("v_readfirstlane_b32 s3, v1")
        e(f"s_lshl_b32 s2, s2, {wpw.bit_length()-1}")
        e("s_add_u32 s2, s2, s3")
    e(f"s_cmp_ge_u32 s2, {nwaves}")
    e("s_cbranch_scc1 L_end")
    e(f"s_mul_i32 s3, s2, {chunk*rows}")
    e("s_add_u32 s3, s3, 4096")
    e("v_lshlrev_b32 v1, 4, v0")
    per = 8192 // chunk
    e(f"v_add_u32 v2, {per*chunk}, v1")
    if lanes < 64:
        e("s_mov_b32 exec_lo, -1")
        e(f"s_mov_b32 exec_hi, {hex((1<<(lanes-32))-1)}")
    e("s_waitcnt lgkmcnt(0)")
    s(e)
    e("s_add_u32 s4, s4, s3")
    e("s_addc_u32 s5, s5, 0")
    e("s_add_u32 s10, s10, s3")
    e("s_addc_u32 s11, s11, 0")
    def addr(r):
        return ("v1", r*chunk-4096) if r < per else ("v2", (r-per)*chunk-4096)
    if mode != "write":
        for r in range(rows):
            a,o = addr(r)
            e(f"global_load_dwordx4 v[{8+4*r}:{11+4*r}], {a}, s[4:5] offset:{o} {ld}")
    s(e)
    if mode == "copy":
        for r in range(rows):
            e(f"s_waitcnt vmcnt({rows-1})")
            if r == 0: s(e)
            a,o = addr(r)
            e(f"global_store_dwordx4 {a}, v[{8+4*r}:{11+4*r}], s[10:11] offset:{o} {st}")
    elif mode == "copyall":
        e(f"s_waitcnt vmcnt({rows-1})")
        s(e)
        e("s_waitcnt vmcnt(0)")
        for r in range(rows):
            a,o = addr(r)
            e(f"global_store_dwordx4 {a}, v[{8+4*r}:{11+4*r}], s[10:11] offset:{o} {st}")
    elif mode == "read":
        e(f"s_waitcnt vmcnt({rows-1})")
        s(e)
        e("s_waitcnt vmcnt(0)")
    elif mode == "write":
        s(e)
        for r in range(rows):
            a,o = addr(r)
            e(f"global_store_dwordx4 {a}, v[{8+4*r}:{11+4*r}], s[10:11] offset:{o} {st}")
    s(e)
    if stamps:
        e("s_waitcnt vmcnt(0)")
        s(e)
        e("s_waitcnt lgkmcnt(0)")
        s.flush(e, 2, 4, 6)
    e.label("L_end")
    e("s_endpgm")
    footer(e, 8+4*rows, 64 if stamps else 24)
    return e.text()
if __name__ == "__main__":
    WT = "sc1 nt"
    for rows, block in [(16,256),(16,64),(8,256),(4,256),(2,256),(1,256),(4,1024),(4,512)]:
        W(f"mc_copy_r{rows:02d}_b{block}", gen(rows, block, "", WT, "copy"))
        W(f"mc_copyall_r{rows:02d}_b{block}", gen(rows, block, "", WT, "copyall"))
        W(f"mc_read_r{rows:02d}_b{block}", gen(rows, block, "", WT, "read"))
        W(f"mc_write_r{rows:02d}_b{block}", gen(rows, block, "", WT, "write"))
    for rows, block in [(14,256),(7,256),(2,256),(1,256)]:
        W(f"mc_lin_copy_r{rows:02d}_b{block}", gen(rows, block, "", WT, "copy", 64))
        W(f"mc_lin_read_r{rows:02d}_b{block}", gen(rows, block, "", WT, "read", 64))
```

```python
import sys
sys.path.insert(0,"gen")
import micro_copy as mc
from gen_a2 import gen
from gen_a import gen as gena
W = lambda n, t: open(f"variants/{n}.s", "w").write(t)
C="sc0 sc1 nt"
W("fl_a2", gen(gbpos=4))
W("fl_base", gena(256,"nt",C))
W("fl_copy16", mc.gen(16,256,"nt",C,"copy"))
W("fl_copyall16", mc.gen(16,256,"nt",C,"copyall"))
W("fl_copy4", mc.gen(4,256,"nt",C,"copy"))
W("fl_copy4b1024", mc.gen(4,1024,"nt",C,"copy"))
W("fl_copy2", mc.gen(2,256,"nt",C,"copy"))
W("fl_copy1", mc.gen(1,256,"nt",C,"copy"))
```
